```python
import torch

def _softmax(x, axis=-1):
    return torch.softmax(x, dim=axis)
def _gelu(x):
    return torch.nn.functional.gelu(x, approximate="tanh")
def _silu(x):
    return torch.nn.functional.silu(x)
def _sigmoid(x):
    return torch.sigmoid(x)
def _layernorm(x, axis=-1, eps=1e-5):
    m = x.mean(dim=axis, keepdim=True)
    v = x.var(dim=axis, keepdim=True, unbiased=False)
    return (x - m) / torch.sqrt(v + eps)
def _scatter_add(tgt, idx, src, axis=0):
    return tgt.clone().index_add_(axis, idx, src)
def _segment_sum(src, seg, n):
    out = torch.zeros((n,) + src.shape[1:], dtype=src.dtype)
    return out.index_add_(0, seg, src)
def _pad(x, pw):
    flat = tuple(v for pair in reversed(pw) for v in pair)
    return torch.nn.functional.pad(x, flat)

kernel_name = 'concat_heads__gqa_block_cached__mha_block_cached__near_ridge'

def setup_inputs():

    _w = (lambda a: (lambda t: t.to(torch.bfloat16) if t.is_floating_point() else t)(torch.as_tensor(a)))
    def _A_setup():
        B, Sq, D = 8, 96, 448
        Hq, Hkv, Sk, Dh = 16, 8, 512, 256
        assert Hq % Hkv == 0, (Hq, Hkv)
        return {
            "x": _w((lambda *s: torch.randn(*s, dtype=torch.bfloat16) * 0.8)(B, Sq, D)),
            "k_cache": _w((lambda *s: torch.randn(*s, dtype=torch.bfloat16) * 0.8)(B, Hkv, Sk, Dh)),
            "v_cache": _w((lambda *s: torch.randn(*s, dtype=torch.bfloat16) * 0.05)(B, Hkv, Sk, Dh)),
            "wq": _w((lambda *s: torch.randn(*s, dtype=torch.bfloat16) * 0.8)(D, Hq * Dh) * (D ** -0.5)),
            "wo": _w((lambda *s: torch.randn(*s, dtype=torch.bfloat16) * 0.05)(Hq * Dh, D) * ((Hq * Dh) ** -0.5)),
        }
    _A_in = _A_setup()

    def _B_setup():
        B, Sq, D = 8, 96, 448
        H, Sk, Dh = 16, 512, 256
        return {
            "x": _w((lambda *s: torch.randn(*s, dtype=torch.bfloat16) * 0.8)(B, Sq, D)),
            "k_cache": _w((lambda *s: torch.randn(*s, dtype=torch.bfloat16) * 0.8)(B, H, Sk, Dh)),
            "v_cache": _w((lambda *s: torch.randn(*s, dtype=torch.bfloat16) * 0.05)(B, H, Sk, Dh)),
            "wq": _w((lambda *s: torch.randn(*s, dtype=torch.bfloat16) * 0.8)(D, H * Dh) * (D ** -0.5)),
            "wo": _w((lambda *s: torch.randn(*s, dtype=torch.bfloat16) * 0.05)(H * Dh, D) * ((H * Dh) ** -0.5)),
        }
    _B_in = _B_setup()

    return {
        "A_x": _A_in["x"],
        "A_k_cache": _A_in["k_cache"],
        "A_v_cache": _A_in["v_cache"],
        "A_wq": _A_in["wq"],
        "A_wo": _A_in["wo"],
        "B_x": _B_in["x"],
        "B_k_cache": _B_in["k_cache"],
        "B_v_cache": _B_in["v_cache"],
        "B_wq": _B_in["wq"],
        "B_wo": _B_in["wo"],
    }

def reference(A_x, A_k_cache, A_v_cache, A_wq, A_wo, B_x, B_k_cache, B_v_cache, B_wq, B_wo):
    def _A_ref(x, k_cache, v_cache, wq, wo):
        B, Sq, D = x.shape
        Hq, Dh = 16, 256
        Hkv = k_cache.shape[1]
        rep = Hq // Hkv
        q = (lambda x, *d: x.permute(*d))((x @ wq).reshape(B, Sq, Hq, Dh), 0, 2, 1, 3)
        k = (lambda x, n, axis: torch.repeat_interleave(x, n, dim=axis))(k_cache, rep, axis=1)
        v = (lambda x, n, axis: torch.repeat_interleave(x, n, dim=axis))(v_cache, rep, axis=1)
        scores = torch.einsum("bhqd,bhkd->bhqk", q, k) * (Dh ** -0.5)
        p = _softmax(scores, axis=-1)
        o = torch.einsum("bhqk,bhkd->bhqd", p, v)
        return (lambda x, *d: x.permute(*d))(o, 0, 2, 1, 3).reshape(B, Sq, Hq * Dh) @ wo

    def _B_ref(x, k_cache, v_cache, wq, wo):
        B, Sq, D = x.shape
        H, Dh = 16, 256
        q = (lambda x, *d: x.permute(*d))((x @ wq).reshape(B, Sq, H, Dh), 0, 2, 1, 3)
        scores = torch.einsum("bhqd,bhkd->bhqk", q, k_cache) * (Dh ** -0.5)
        p = _softmax(scores, axis=-1)
        o = torch.einsum("bhqk,bhkd->bhqd", p, v_cache)
        return (lambda x, *d: x.permute(*d))(o, 0, 2, 1, 3).reshape(B, Sq, H * Dh) @ wo

    a = _A_ref(A_x, A_k_cache, A_v_cache, A_wq, A_wo)
    b = _B_ref(B_x, B_k_cache, B_v_cache, B_wq, B_wo)
    return torch.concatenate([a, b], axis=-1)
```

```python
NAME = 'concat_heads__gqa_block_cached__mha_block_cached__near_ridge'

class Asm:
    def __init__(self):
        self.lines = []
    def __call__(self, s=''):
        for l in s.split('\n'):
            self.lines.append(l)
    def text(self):
        return '\n'.join(self.lines) + '\n'

def header(launches):
    s = []
    for k, g, b, lds in launches:
        s.append('; @launch kernel=%s grid=(%d,%d,%d) block=(%d,%d,%d) lds=%d' % (k, *g, *b, lds))
    s.append('.amdgcn_target "amdgcn-amd-amdhsa--gfx950"')
    s.append('.text')
    return '\n'.join(s) + '\n'

def kernel_begin(name):
    return '.globl %s\n.p2align 8\n.type %s,@function\n%s:\n' % (name, name, name)

def kernel_desc(name, vgpr, sgpr, accum):
    return '''.section .rodata,"a"
.p2align 6
.amdhsa_kernel %s
  .amdhsa_next_free_vgpr %d
  .amdhsa_next_free_sgpr %d
  .amdhsa_accum_offset %d
  .amdhsa_group_segment_fixed_size 0
  .amdhsa_kernarg_size 104
  .amdhsa_user_sgpr_count 2
  .amdhsa_user_sgpr_kernarg_segment_ptr 1
  .amdhsa_system_sgpr_workgroup_id_x 1
  .amdhsa_float_denorm_mode_32 3
.end_amdhsa_kernel
.text
''' % (name, vgpr, sgpr, accum)
```

```python
import re

def regs(spec):
    if isinstance(spec, (list, tuple)):
        out = []
        for s in spec: out += regs(s)
        return out
    spec = spec.strip()
    m = re.fullmatch(r'([vas])\[(\d+):(\d+)\]', spec)
    if m:
        return ['%s%d' % (m.group(1), i) for i in range(int(m.group(2)), int(m.group(3)) + 1)]
    return [spec]

def R(kind, lo, n=1):
    return '%s%d' % (kind, lo) if n == 1 else '%s[%d:%d]' % (kind, lo, lo + n - 1)

class Ins:
    __slots__ = ('text', 'kind', 'rd', 'wr', 'cin', 'tag', 'cost')
    def __init__(self, text, kind, rd=(), wr=(), cin=(), tag=None, cost=1):
        self.text = text; self.kind = kind
        self.rd = set(regs(list(rd))); self.wr = set(regs(list(wr))); self.cin = set(regs(list(cin)))
        self.tag = tag; self.cost = cost

def isreg(x):
    return isinstance(x, str) and re.fullmatch(r'[vas]\d+|[vas]\[\d+:\d+\]|vcc|exec|m0', x) is not None

def mfma(d, a, b, c):
    rd = [a, b] + ([c] if isreg(c) else [])
    return Ins('v_mfma_f32_32x32x16_bf16 %s, %s, %s, %s' % (d, a, b, c), 'mfma', rd, [d], cin=([c] if isreg(c) else []))
def valu(op, d, *src, trans=False, extra_rd=(), extra_wr=(), rmw=False):
    rd = [s for s in src if isreg(s)] + list(extra_rd) + ([d] if rmw else [])
    rd = [x.lstrip('-') for x in rd]
    return Ins('%s %s, %s' % (op, d, ', '.join(str(s) for s in src)), 'trans' if trans else 'valu', rd, [d] + list(extra_wr))
def valu_neg(op, d, *src, **kw):
    rd = [str(s).lstrip('-') for s in src if isreg(str(s).lstrip('-'))]
    return Ins('%s %s, %s' % (op, d, ', '.join(str(s) for s in src)), 'valu', rd, [d])
def salu(op, d, *src, scc=False):
    rd = [s for s in src if isreg(s)]
    txt = '%s %s' % (op, ', '.join([str(d)] + [str(s) for s in src]))
    return Ins(txt, 'salu', rd, [d] if isreg(d) else [])
def scmp(op, x, y):
    return Ins('%s %s, %s' % (op, x, y), 'salu', [s for s in (x, y) if isreg(s)], [])
def ds_read128(d, addr, off):
    assert 0 <= off < 65536, off
    return Ins('ds_read_b128 %s, %s offset:%d' % (d, addr, off), 'ds_read', [addr], [d])
def ds_readtr(d, addr, off):
    assert 0 <= off < 65536, off
    return Ins('ds_read_b64_tr_b16 %s, %s offset:%d' % (d, addr, off), 'ds_read', [addr], [d])
def ds_read64(d, addr, off):
    return Ins('ds_read_b64 %s, %s offset:%d' % (d, addr, off), 'ds_read', [addr], [d])
def ds_write128(addr, s, off):
    return Ins('ds_write_b128 %s, %s offset:%d' % (addr, s, off), 'ds_write', [addr, s], [])
def dma(voff, srd, soff, imm=0, pol='', tag=None, extra_rd=()):
    assert 0 <= imm < 4096
    t = 'buffer_load_dwordx4 %s, %s, %s offen' % (voff, srd, soff)
    if imm: t += ' offset:%d' % imm
    t += pol + ' lds'
    return Ins(t, 'dma', [voff, srd, 'm0'] + ([soff] if isreg(soff) else []) + list(extra_rd), [], tag=tag)
def bload(d, n, voff, srd, soff, imm=0, pol='', tag=None):
    op = {1: 'buffer_load_dword', 2: 'buffer_load_dwordx2', 4: 'buffer_load_dwordx4'}[n]
    t = '%s %s, %s, %s, %s offen' % (op, d, voff, srd, soff)
    if imm: t += ' offset:%d' % imm
    t += pol
    return Ins(t, 'vload', [voff, srd] + ([soff] if isreg(soff) else []), [d], tag=tag)
def bstore(s, n, voff, srd, soff, imm=0, pol='', tag=None):
    op = {1: 'buffer_store_dword', 2: 'buffer_store_dwordx2', 4: 'buffer_store_dwordx4'}[n]
    t = '%s %s, %s, %s, %s offen' % (op, s, voff, srd, soff)
    if imm: t += ' offset:%d' % imm
    t += pol
    return Ins(t, 'vstore', [s, voff, srd] + ([soff] if isreg(soff) else []), [], tag=tag)
def raw(text, kind='salu', rd=(), wr=()):
    return Ins(text, kind, rd, wr)

VALU_KINDS = ('valu', 'trans', 'permlane', 'dpp', 'readlane')

class Emitter:
    def __init__(self, name=''):
        self.out = []
        self.t = 0
        self.lastw = {}
        self.lastc = {}
        self.laststore = {}
        self.lg = []
        self.vm = []
        self.nnop = 0; self.nwait = 0
        self.name = name
    def text(self):
        return '\n'.join(self.out) + '\n'
    def comment(self, s):
        self.out.append('  ; ' + s)
    def label(self, s):
        self.out.append(s + ':')
    def _emit(self, s, dt=1):
        self.out.append('  ' + s); self.t += dt
    def nop(self, n):
        while n > 0:
            k = min(n, 16)
            self._emit('s_nop %d' % (k - 1), k); self.nnop += k; n -= k
    def stall_states(self, I):
        need = 0
        touched = I.rd | I.wr
        for r in I.rd:
            if r in self.lastw:
                tw, k = self.lastw[r]
                gap = self.t - tw - 1
                req = 0
                if k == 'mfma':
                    if I.kind == 'mfma':
                        if r in I.cin:
                            req = 0 if self.lastw_meta.get(r) == frozenset(I.cin) else 10
                        else: req = 12
                    else: req = 12
                elif k in VALU_KINDS:
                    if I.kind == 'mfma': req = 2
                    elif I.kind == 'permlane' and r[0] in 'va': req = 2
                    elif I.kind == 'dpp' and r[0] == 'v': req = 2
                    elif I.kind == 'readlane' and r[0] == 'v': req = 1
                    elif k == 'trans' and I.kind in ('valu', 'permlane', 'dpp', 'readlane', 'vstore', 'ds_write', 'dma', 'vload', 'ds_read'): req = 1
                    if (r[0] == 's' or r == 'vcc'):
                        if I.kind in VALU_KINDS: req = max(req, 2)
                        if I.kind in ('vload', 'vstore', 'dma'): req = max(req, 5)
                        if I.kind == 'salu': req = max(req, 1)
                elif k == 'salu':
                    if r == 'm0' and I.kind == 'dma': req = 1
                need = max(need, req - gap)
        for r in I.wr:
            if r in self.lastw:
                tw, k = self.lastw[r]
                gap = self.t - tw - 1
                if k == 'mfma' and I.kind != 'mfma':
                    need = max(need, 12 - gap)
                if k == 'mfma' and I.kind == 'mfma' and r not in I.cin:
                    need = max(need, 10 - gap)
            if r in self.lastc and I.kind in VALU_KINDS:
                need = max(need, 7 - (self.t - self.lastc[r] - 1))
            if r in self.laststore:
                need = max(need, (2 if I.kind in VALU_KINDS else 1) - (self.t - self.laststore[r] - 1))
        return max(need, 0)
    lastw_meta = None
    def pend_lg(self, I):
        touched = I.rd | I.wr
        idx = -1
        for i, d in enumerate(self.lg):
            if d & touched: idx = i
        return idx
    def pend_vm(self, I):
        touched = I.rd | I.wr
        idx = -1
        for i, (d, tag) in enumerate(self.vm):
            if d & touched: idx = i
        return idx
    def would_wait(self, I):
        return self.pend_lg(I) >= 0 or self.pend_vm(I) >= 0
    def wait(self, vm=None, lg=None):
        parts = []
        if vm is not None:
            vmn = min(vm, 63)
            if vm < len(self.vm):
                self.vm = self.vm[len(self.vm) - vm:] if vm > 0 else []
            parts.append('vmcnt(%d)' % vmn)
        if lg is not None:
            lgn = min(lg, 15)
            if lgn < len(self.lg):
                self.lg = self.lg[len(self.lg) - lgn:] if lgn > 0 else []
            parts.append('lgkmcnt(%d)' % lgn)
        self._emit('s_waitcnt ' + ' '.join(parts)); self.nwait += 1
    def wait_vm_tag(self, tag, force=False):
        idx = -1
        for i, (d, tg) in enumerate(self.vm):
            if tg == tag: idx = i
        if idx < 0:
            return False
        n = len(self.vm) - 1 - idx
        if n >= 63:
            self.vm = self.vm[idx + 1:]
            return False
        self.wait(vm=n)
        return True
    def put(self, I):
        if self.lastw_meta is None: self.lastw_meta = {}
        i = self.pend_lg(I); j = self.pend_vm(I)
        if i >= 0 or j >= 0:
            self.wait(vm=(len(self.vm) - 1 - j) if j >= 0 else None, lg=(len(self.lg) - 1 - i) if i >= 0 else None)
        if I.kind in ('vload', 'dma', 'vstore') and len(self.vm) >= 63:
            self.wait(vm=62)
        if I.kind in ('ds_read', 'ds_write') and len(self.lg) >= 15:
            self.wait(lg=14)
        n = self.stall_states(I)
        if n: self.nop(n)
        tcur = self.t
        self._emit(I.text)
        for r in I.wr:
            self.lastw[r] = (tcur, I.kind)
            self.lastw_meta[r] = frozenset(I.wr) if I.kind == 'mfma' else None
            self.lastc.pop(r, None);
        if I.kind == 'mfma':
            for r in I.cin: self.lastc[r] = tcur
        if I.kind == 'vstore':
            for r in I.rd: self.laststore[r] = tcur
        if I.kind == 'ds_read': self.lg.append(set(I.wr))
        elif I.kind == 'ds_write': self.lg.append(set())
        elif I.kind == 'smem': self.lg.append(set(I.wr))
        elif I.kind in ('vload', 'dma', 'vstore'):
            self.vm.append((set(I.wr), I.tag))
            if len(self.vm) > 63:
                self.vm = self.vm[-63:]
        if I.kind == 'ds_read' or I.kind == 'ds_write':
            assert len(self.lg) <= 15 + 8, 'too many lgkm outstanding'
    def barrier(self):
        self._emit('s_barrier')
    def rawline(self, s, dt=1):
        self._emit(s, dt)
```

```python
import sys, argparse
from emit import *
from asmlib import header, kernel_begin, kernel_desc

SLOT = 16384
SIG = [9, 3, 4, 5, 0, 1, 2, 8, 6, 7]
def slot(n): return SIG[n % 10] * SLOT
WQ_BASE = 6 * SLOT
LA = 4
NF = 8
FR0 = 224
C_SCALE = 0.09016844005556021
T_THR = 8.0

class Cfg:
    polK = ' nt'; polV = ' nt'; polWQ = ' nt'; polWO = ' nt'; polX = ''; polPre = ' nt'; polP = ' nt'
    stamps = False
    pretouch = True
    k2pol = ''
    diagstart = False
    noload = False
    budget = 6
    nobar = False
    kq_sched = '6,9,12,15,18,20,22,25,27'
    x_dma2 = '4,24,44'
    x_rd = '-1,12,36,60,84,100,116'
    x_dma01 = '2,10'
    dist = 8
    cyc = False
    stamp_list = 'start,q0,q4,q8,q12,q16,q20,q24,s0,s8,s16,s24,s32,s40,mend,end'
cfg = Cfg()

sWAVE = 's3'; sB = 's6'; sHEAD = 's7'
SRD_X = 's[12:15]'; SRD_K = 's[16:19]'; SRD_V = 's[20:23]'; SRD_WQ = 's[24:27]'; SRD_WO = 's[28:31]'; SRD_P = 's[32:35]'
sT0, sT1, sT2, sT3 = 's36', 's37', 's38', 's39'
sSOFF = 's40'; sRET = 's41'; sC = 's42'; sXB = 's43'; sPW = 's44'
STAMPS = list(range(46, 64, 2)) + list(range(88, 102, 2))
STAMP_NAMES = {}
def stamp(E, name):
    if not cfg.stamps: return
    if name not in cfg.stamp_list.split(','): return
    i = cfg.stamp_list.split(',').index(name)
    E.put(Ins('%s s[%d:%d]' % ('s_memtime' if (cfg.cyc and name != 'start') else 's_memrealtime', STAMPS[i], STAMPS[i] + 1), 'salu', [], []))

def common_prologue(E):
    E.rawline('s_cmp_ge_u32 s2, 256')
    E.rawline('s_cbranch_scc1 L_end')
    stamp(E, 'start')
    E.rawline('s_load_dwordx8 s[64:71], s[0:1], 0')
    E.rawline('s_load_dwordx2 s[72:73], s[0:1], 32')
    E.rawline('s_load_dwordx8 s[76:83], s[0:1], 40')
    E.rawline('s_load_dwordx2 s[84:85], s[0:1], 72')
    E.rawline('s_load_dwordx2 s[86:87], s[0:1], 96')
    E.put(valu('v_lshrrev_b32', 'v1', 6, 'v0'))
    E.put(valu('v_and_b32', 'v0', 63, 'v0'))
    E.put(Ins('v_readfirstlane_b32 s3, v1', 'readlane', ['v1'], ['s3']))
    E.rawline('s_and_b32 s4, s2, 7')
    E.rawline('s_lshr_b32 s8, s2, 3')
    E.rawline('s_lshr_b32 s5, s8, 4')
    E.rawline('s_lshr_b32 s6, s8, 1')
    E.rawline('s_and_b32 s6, s6, 7')
    E.rawline('s_and_b32 s9, s8, 1')
    E.rawline('s_lshl_b32 s7, s4, 1')
    E.rawline('s_add_u32 s7, s7, s9')
    E.rawline('s_lshl_b32 s10, s6, 3')
    E.rawline('s_add_u32 s10, s10, s4')
    E.rawline('s_lshl_b32 s11, s6, 4')
    E.rawline('s_add_u32 s11, s11, s7')
    E.rawline('s_cmp_eq_u32 s5, 0')
    E.rawline('s_cselect_b32 s10, s10, s11')
    E.rawline('s_lshl_b32 s36, s5, 7')
    E.rawline('s_add_u32 s11, s11, s36')
    E.rawline('s_waitcnt lgkmcnt(0)')
    E.rawline('s_cmp_eq_u32 s5, 0')
    E.rawline('s_cselect_b64 s[64:65], s[64:65], s[76:77]')
    E.rawline('s_cselect_b64 s[66:67], s[66:67], s[78:79]')
    E.rawline('s_cselect_b64 s[68:69], s[68:69], s[80:81]')
    E.rawline('s_cselect_b64 s[70:71], s[70:71], s[82:83]')
    E.rawline('s_cselect_b64 s[72:73], s[72:73], s[84:85]')
    def srd(base, ptr, offreg, size):
        E.rawline('s_add_u32 s%d, s%d, %s' % (base, ptr, offreg))
        E.rawline('s_addc_u32 s%d, s%d, 0' % (base + 1, ptr + 1))
        E.rawline('s_and_b32 s%d, s%d, 0xffff' % (base + 1, base + 1))
        if isinstance(size, int): E.rawline('s_mov_b32 s%d, %d' % (base + 2, size))
        else: E.rawline('s_mov_b32 s%d, %s' % (base + 2, size))
        E.rawline('s_mov_b32 s%d, 0x20000' % (base + 3))
    E.rawline('s_mul_i32 s36, s6, 86016'); srd(12, 64, 's36', 86016)
    E.rawline('s_lshl_b32 s36, s10, 18'); srd(16, 66, 's36', 262144)
    srd(20, 68, 's36', 262144)
    E.rawline('s_lshl_b32 s36, s7, 9')
    E.rawline('s_sub_u32 s37, %d, s36' % (448 * 8192)); srd(24, 70, 's36', 's37')
    E.rawline('s_mul_i32 s36, s7, 229376'); srd(28, 72, 's36', 229376)
    E.rawline('s_mul_i32 s36, s11, 86016'); srd(32, 86, 's36', 86016)

def gen_loader(E):
    E.comment('---------------- loader wave ----------------')
    if cfg.noload:
        Pm = E.put
        def Pn(I):
            if I.kind in ('dma', 'vload'): return
            Pm(I)
        E.put = Pn
    vK = ['v%d' % (10 + i) for i in range(8)]
    vQ = ['v%d' % (20 + i) for i in range(4)]
    vV = ['v%d' % (24 + i) for i in range(4)]
    vO = ['v%d' % (30 + i) for i in range(7)]
    vPQ = ['v%d' % (40 + i) for i in range(4)]
    vPO = 'v44'; vD = 'v45'
    t0, t1, t2, t3, t4 = 'v2', 'v3', 'v4', 'v5', 'v6'
    P = E.put
    P(valu('v_lshrrev_b32', t0, 5, 'v0')); P(valu('v_and_b32', t1, 31, 'v0'))
    for j in range(4):
        P(valu('v_add_u32', t2, (2 * j) % 4, t0))
        P(valu('v_lshlrev_b32', t2, 2, t2))
        P(valu('v_xor_b32', t2, t2, t1))
        P(valu('v_lshlrev_b32', t2, 4, t2))
        P(valu('v_lshlrev_b32', t3, 13, t0))
        P(valu('v_add_u32', t2, t2, t3))
        P(valu('v_add_u32', vQ[j], j * (16384 - 1024), t2))
    vPQ0 = 'v40'
    if cfg.pretouch:
        E.rawline('s_mul_i32 s45, s6, %d' % (56 * 8192))
        P(valu('v_lshlrev_b32', t2, 13, t0))
        P(valu('v_lshl_add_u32', vPQ0, t1, 4, t2))
    def pretouch_wq(lo, hi):
        for p in range(lo, hi):
            P(salu('s_add_u32', sSOFF, 's45', p * 16384))
            P(bload(R('v', 64 + 4 * p, 4), 4, vPQ0, SRD_WQ, sSOFF, 0, cfg.polPre))
    issued = []
    def issue_wq(kq):
        base = WQ_BASE + (kq % 6) * 8192
        for g in range(2):
            P(salu('s_mov_b32', 'm0', base + g * 4096))
            P(salu('s_mov_b32', sSOFF, kq * 131072 + g * 65536))
            for j in range(4):
                P(dma(vQ[j], SRD_WQ, sSOFF, j * 1024, cfg.polWQ, tag=('wq', kq)))
    issue_wq(0)
    issue_wq(1)
    for p8 in range(8):
        P(valu('v_add_u32', t2, 2 * p8, t0))
        P(valu('v_xor_b32', t2, t2, t1))
        P(valu('v_lshlrev_b32', t2, 4, t2))
        P(valu('v_lshlrev_b32', t3, 9, t0))
        P(valu('v_add_u32', vK[p8], t2, t3))
    def issue_k(n):
        for g in range(4):
            P(salu('s_mov_b32', 'm0', slot(n) + g * 4096))
            P(salu('s_mov_b32', sSOFF, n * 16384 + g * 4096))
            for j in range(4):
                P(dma(vK[(4 * g + j) % 8], SRD_K, sSOFF, j * 1024, cfg.polK, tag=('s', n)))
    P(valu('v_lshrrev_b32', t2, 3, 'v0'))
    P(valu('v_and_b32', t3, 7, 'v0'))
    P(valu('v_lshrrev_b32', t4, 4, 'v0'))
    P(valu('v_and_b32', t4, 1, t4))
    P(valu('v_lshlrev_b32', t4, 2, t4))
    P(valu('v_xor_b32', t3, t3, t4))
    P(valu('v_lshlrev_b32', t3, 4, t3))
    P(valu('v_lshlrev_b32', t2, 9, t2))
    P(valu('v_add_u32', t2, t2, t3))
    for j in range(4):
        P(valu('v_add_u32', vV[j], j * (4096 - 1024), t2))
    E.rawline('s_mov_b32 s37, 0x4924925')
    for p in range(7):
        P(valu('v_add_u32', t2, 64 * p, 'v0'))
        P(Ins('v_mul_hi_u32 %s, %s, s37' % (t3, t2), 'valu', [t2, 's37'], [t3]))
        P(valu('v_mul_u32_u24', t4, 56, t3))
        P(valu('v_sub_u32', t2, t2, t4))
        P(valu('v_lshrrev_b32', t4, 1, t3))
        P(valu('v_and_b32', t4, 1, t4))
        P(valu('v_lshlrev_b32', t4, 2, t4))
        P(valu('v_xor_b32', t2, t2, t4))
        P(valu('v_lshlrev_b32', t2, 4, t2))
        P(valu('v_mul_u32_u24', t3, 896, t3))
        P(valu('v_add_u32', vO[p], t2, t3))
    P(valu('v_lshlrev_b32', vPO, 4, 'v0'))
    E.rawline('s_mul_i32 s36, s6, 7168')
    def issue_v(n, s, u):
        for g in range(4):
            P(salu('s_mov_b32', 'm0', slot(n) + g * 4096))
            P(salu('s_mov_b32', sSOFF, u * 65536 + g * 16384 + s * 128))
            for j in range(4):
                P(dma(vV[j], SRD_V, sSOFF, j * 1024, cfg.polV, tag=('s', n)))
    def issue_wo(n, s, tp):
        tb = (64 * s + 16 * tp) * 896
        for p in range(14):
            P(salu('s_mov_b32', 'm0', slot(n) + p * 1024))
            if p % 7 == 0: P(salu('s_mov_b32', sSOFF, tb + (p // 7) * 7168))
            else: E.nop(0)
            P(dma(vO[p % 7], SRD_WO, sSOFF, 0, cfg.polWO, tag=('s', n)))
    def issue_stream(n):
        if n < 16: issue_k(n)
        else:
            m = n - 16; s = m // 8; r = m % 8
            if r < 4: issue_v(n, s, r)
            else: issue_wo(n, s, r - 4)
    ksch = [int(t) for t in cfg.kq_sched.split(',')]
    for kq in range(28):
        E.wait_vm_tag(('wq', kq))
        E.barrier()
        stamp(E, 'q%d' % kq)
        if kq == 0:
            issue_wq(2)
            if cfg.pretouch: pretouch_wq(0, 28)
        elif kq == 1: issue_wq(3); issue_wq(4)
        elif kq == 2: issue_wq(5); issue_wq(6)
        elif kq <= 23: issue_wq(kq + 4)
        for n, at in enumerate(ksch):
            if at == kq: issue_stream(n)
    for n in range(45):
        if n == 44:
            E.wait(vm=0)
        else:
            E.wait_vm_tag(('s', n))
        E.barrier()
        stamp(E, 's%d' % n)
        if n == 1: issue_stream(9)
        if 2 <= n <= 39: issue_stream(n + 8)
        if cfg.pretouch and n >= 4 and (n - 4) % 8 == 0 and (n - 4) // 8 < 4:
            s = (n - 4) // 8
            for p in range(7):
                P(salu('s_add_u32', 's37', 's36', s * 57344 + p * 1024))
                P(bload(R('v', 192 + 4 * ((7 * s + p) % 14), 4), 4, vPO, SRD_WO, 's37', 0, cfg.polPre))
    stamp(E, 'end')

class Op:
    def __init__(self, m, reads, pre=None):
        self.m = m; self.reads = reads; self.pre = pre or []

def gen_consumer(E):
    if cfg.noload:
        Pm = E.put
        def Pn(I):
            if I.kind in ('dma',): return
            if I.kind == 'branch': return
            Pm(I)
        E.put = Pn
    P = E.put
    vAX = ['v%d' % (224 + i) for i in range(4)]
    vAQ = ['v%d' % (228 + i) for i in range(4)]
    vAK = ['v%d' % (232 + i) for i in range(8)]
    vAV = ['v240', 'v241']; vAO = ['v242', 'v243']
    vNM = 'v244'; vTHR = 'v245'; vL = 'v246'; vRL = 'v247'; vM = 'v248'; vT = 'v249'; vT2 = 'v250'; vST = 'v251'
    vXo = ['v252', 'v253']
    vKo = ['v%d' % (192 + i) for i in range(8)]
    t0, t1, t2, t3, t4, t5 = 'v2', 'v3', 'v4', 'v5', 'v6', 'v7'
    P(valu('v_lshrrev_b32', t0, 3, 'v0'))
    P(valu('v_mul_u32_u24', t0, 896, t0))
    P(valu('v_and_b32', t1, 7, 'v0'))
    P(valu('v_lshrrev_b32', t2, 4, 'v0'))
    for par in range(2):
        P(valu('v_add_u32', t3, 4 * par, t2))
        P(valu('v_xor_b32', t3, t3, t1))
        P(valu('v_lshlrev_b32', t3, 4, t3))
        P(valu('v_add_u32', vXo[par], t3, t0))
    E.rawline('s_lshl_b32 %s, s3, 14' % sXB)
    E.rawline('s_mul_i32 %s, s3, %d' % (sT0, 32 * 896))
    def xdma(kc, extra_rd=()):
        g = []
        for p4 in range(4):
            g.append(salu('s_add_u32', 'm0', sXB, (kc % 4) * 4096 + p4 * 1024))
            g.append(salu('s_add_u32', sSOFF, sT0, p4 * 8 * 896 + kc * 128))
            g.append(dma(vXo[p4 % 2], SRD_X, sSOFF, 0, cfg.polX, tag=('x', kc), extra_rd=(extra_rd if p4 == 0 else ())))
        return g
    for kc in range(2):
        for I in xdma(kc): P(I)
    P(valu('v_lshrrev_b32', t0, 5, 'v0'))
    P(valu('v_lshrrev_b32', t1, 4, 'v0')); P(valu('v_and_b32', t1, 1, t1))
    P(valu('v_lshrrev_b32', t2, 2, 'v0')); P(valu('v_and_b32', t2, 3, t2))
    P(valu('v_and_b32', t3, 3, 'v0'))
    P(valu('v_and_b32', t4, 1, t3)); P(valu('v_lshlrev_b32', t4, 1, t4))
    P(valu('v_lshrrev_b32', t5, 1, t3)); P(valu('v_or_b32', t4, t4, t5))
    u0, u1, u2 = 'v8', 'v9', 'v10'
    P(valu('v_lshrrev_b32', u0, 1, t4)); P(valu('v_lshl_add_u32', u0, t1, 1, u0)); P(valu('v_lshlrev_b32', u0, 4, u0))
    P(valu('v_and_b32', u2, 1, t4)); P(valu('v_lshl_add_u32', u0, u2, 3, u0))
    P(valu('v_lshrrev_b32', u1, 1, t3)); P(valu('v_lshl_add_u32', u1, t1, 1, u1)); P(valu('v_lshlrev_b32', u1, 4, u1))
    P(valu('v_and_b32', u2, 1, t3)); P(valu('v_lshl_add_u32', u1, u2, 3, u1))
    w0, w1 = 'v11', 'v12'
    P(valu('v_lshl_add_u32', w0, t0, 3, t2)); P(valu('v_lshlrev_b32', w0, 9, w0)); P(valu('v_add_u32', w0, w0, u0))
    P(valu('v_add_u32', w0, WQ_BASE, w0))
    for dl in range(4):
        P(valu('v_xor_b32', w1, dl, t2)); P(valu('v_lshl_add_u32', vAQ[dl], w1, 6, w0))
    P(valu('v_lshl_add_u32', w0, t0, 2, t2)); P(valu('v_lshlrev_b32', w0, 7, w0)); P(valu('v_add_u32', w0, w0, u1))
    P(valu('v_lshrrev_b32', u2, 1, t2))
    for db in range(2):
        P(valu('v_xor_b32', w1, db, u2)); P(valu('v_lshl_add_u32', vAV[db], w1, 6, w0))
        P(valu('v_add_u32', vAV[db], slot(16), vAV[db]))
    P(valu('v_lshl_add_u32', w0, t0, 2, t2)); P(valu('v_mul_u32_u24', w0, 896, w0)); P(valu('v_add_u32', w0, w0, u0))
    P(valu('v_lshlrev_b32', w1, 6, u2))
    P(valu('v_add_u32', vAO[0], w0, w1)); P(valu('v_sub_u32', vAO[1], w0, w1))
    for e in range(2): P(valu('v_add_u32', vAO[e], slot(20), vAO[e]))
    P(valu('v_and_b32', w0, 31, 'v0')); P(valu('v_and_b32', w1, 15, 'v0')); P(valu('v_xor_b32', w1, w1, t0))
    P(valu('v_lshlrev_b32', w0, 9, w0)); P(valu('v_add_u32', w0, slot(0), w0))
    for k8 in range(8):
        P(valu('v_xor_b32', u2, 2 * k8, w1)); P(valu('v_lshl_add_u32', vAK[k8], u2, 4, w0))
    P(valu('v_and_b32', w0, 31, 'v0')); P(valu('v_lshrrev_b32', w1, 1, w0)); P(valu('v_and_b32', w1, 7, w1)); P(valu('v_xor_b32', w1, w1, t0))
    P(valu('v_lshlrev_b32', w0, 7, w0)); P(Ins('v_add_u32 %s, %s, %s' % (w0, sXB, w0), 'valu', [sXB, w0], [w0]))
    for k4 in range(4):
        P(valu('v_xor_b32', u2, 2 * k4, w1)); P(valu('v_lshl_add_u32', vAX[k4], u2, 4, w0))
    P(valu('v_lshlrev_b32', vST, 4, 'v0'))
    E.rawline('s_mul_i32 %s, s3, 28672' % sPW)
    E.rawline('s_mov_b32 %s, 0x%08x' % (sC, f32bits(C_SCALE)))

    fidx = [0]
    def newfrag():
        f = fidx[0] % NF; fidx[0] += 1
        return FR0 + 4 * f
    ops = []
    fill = []
    def tr_frag(addr, off0, off1):
        f = newfrag()
        return R('a', f, 4), [ds_readtr(R('a', f, 2), addr, off0), ds_readtr(R('a', f + 2, 2), addr, off1)]
    BAR = 'BAR'
    for kq in range(28):
        for db in range(8):
            base = (kq % 6) * 8192 + (db // 4) * 256
            fr, rd = tr_frag(vAQ[db % 4], base, base + 2048)
            d = R('v', 16 * db, 16)
            o = Op(mfma(d, fr, R('a', 4 * kq, 4), d if kq else 0), rd)
            if db == 0: o.pre.append((BAR, ('q', kq)))
            ops.append(o)
    nQ = len(ops)
    xr = [int(t) for t in cfg.x_rd.split(',')]
    ev = []
    for kc in range(7):
        for k4 in range(4):
            I = ds_read128(R('a', 4 * (4 * kc + k4), 4), vAX[k4], (kc % 4) * 4096)
            ev.append((xr[kc], 0, kc * 4 + k4, I, ('vmwait', ('x', kc)) if k4 == 0 else None))
    d01 = [int(t) for t in cfg.x_dma01.split(',')]
    d2 = [int(t) for t in cfg.x_dma2.split(',')]
    for kc in range(2, 7):
        at = d01[kc - 2] if kc < 4 else d2[kc - 4]
        extra = regs(R('a', 16 * (kc - 4), 16)) if kc >= 4 else ()
        assert kc < 4 or at >= xr[kc - 4]
        assert at < xr[kc]
        for q, I in enumerate(xdma(kc, extra)):
            ev.append((at + 2 * (q // 3), 1, kc * 100 + q, I, None))
    ev.sort(key=lambda t: (t[0], t[1], t[2]))
    for at, _, _, I, extra in ev: fill.append((at, I, extra))
    for db in range(8):
        for u in range(2):
            for i in range(4):
                s0 = 16 * db + 8 * u + 2 * i
                fill.append((nQ - 8 + db + 1, valu('v_cvt_pk_bf16_f32', 'v%d' % (128 + 4 * (2 * db + u) + i), 'v%d' % s0, 'v%d' % (s0 + 1)), None))
    def softmax_fill(n, at):
        S0 = 192 + 16 * (n % 2)
        s = ['v%d' % (S0 + i) for i in range(16)]
        F = []
        F.append(valu('v_max3_f32', vT, s[0], s[1], s[2]))
        for i in range(6): F.append(valu('v_max3_f32', vT, vT, s[3 + 2 * i], s[4 + 2 * i]))
        F.append(valu('v_max_f32', vT, vT, s[15]))
        for I in F: fill.append((at, I, None))
        if n == 0:
            G = [valu('v_mov_b32', vT2, vT),
                 Ins('v_permlane32_swap_b32 %s, %s' % (vT, vT2), 'permlane', [vT, vT2], [vT, vT2]),
                 valu('v_max_f32', vM, vT, vT2),
                 Ins('v_mul_f32 %s, %s, %s' % (vNM, sC, vM), 'valu', [sC, vM], [vNM]),
                 valu('v_sub_f32', vNM, 0, vNM),
                 valu('v_add_f32', vTHR, fl(T_THR / C_SCALE), vM),
                 valu('v_mov_b32', vL, 0)]
            for I in G: fill.append((at, I, None))
        else:
            fill.append((at, Ins('v_cmp_gt_f32 vcc, %s, %s' % (vT, vTHR), 'valu', [vT, vTHR], ['vcc']), None))
            fill.append((at, Ins('s_cbranch_vccnz L_rare_%d' % n, 'branch', ['vcc'], []), ('ret', n)))
        for i0 in range(0, 16, 4):
            grp = range(i0, i0 + 4)
            for i in grp: fill.append((at, Ins('v_fma_f32 %s, %s, %s, %s' % (s[i], s[i], sC, vNM), 'valu', [s[i], sC, vNM], [s[i]]), None))
            for i in grp: fill.append((at, valu('v_exp_f32', s[i], s[i], trans=True), None))
            for i in grp: fill.append((at, valu('v_add_f32', vL, vL, s[i]), None))
            for i in (i0, i0 + 2): fill.append((at, valu('v_cvt_pk_bf16_f32', 'v%d' % (8 * n + i // 2), s[i], s[i + 1]), None))
    for n in range(16):
        i0 = len(ops)
        S0 = 192 + 16 * (n % 2)
        d = R('v', S0, 16)
        for ks in range(16):
            f = newfrag()
            rd = [ds_read128(R('a', f, 4), vAK[ks % 8], (ks // 8) * 256)]
            o = Op(mfma(d, R('a', f, 4), R('v', 128 + 4 * ks, 4), d if ks else 0), rd)
            if ks >= 8 and n < 15:
                delta = slot(n + 1) - slot(n)
                o.post_reads = [valu('v_add_u32', vAK[ks - 8], delta & 0xffffffff, vAK[ks - 8])]
            if ks == 0: o.pre.append((BAR, ('s', n)))
            ops.append(o)
        if n >= 1: softmax_fill(n - 1, i0 + 1)
    nQK = len(ops)
    epi = []
    for s in range(4):
        nb0 = 16 + 8 * s
        for u in range(4):
            n = nb0 + u
            order = [(t8, db) for t8 in range(8) for db in range(2)] if u < 3 else [(t8, db) for db in range(2) for t8 in range(8)]
            cnt = {0: 0, 1: 0}
            for k, (t8, db) in enumerate(order):
                off = t8 * 2048
                fr, rd = tr_frag(vAV[db], off, off + 1024)
                d = R('v', 128 + 16 * db, 16)
                t = 8 * u + t8
                first = (u == 0 and t8 == 0)
                o = Op(mfma(d, fr, R('v', 4 * t, 4), 0 if first else d), rd)
                cnt[db] += 1
                if cnt[db] == 8:
                    nxt = n + 1 if u < 3 else n + 5
                    if nxt < 48 - 4 + 4 and not (s == 3 and u == 3):
                        o.post_reads = [valu('v_add_u32', vAV[db], (slot(nxt) - slot(n)) & 0xffffffff, vAV[db])]
                if k == 0: o.pre.append((BAR, ('s', n)))
                ops.append(o)
            if s == 0 and u == 0:
                i0 = len(ops) - 16
                softmax_fill(15, i0 + 1)
                G = [valu('v_mov_b32', vT2, vL),
                     Ins('v_permlane32_swap_b32 %s, %s' % (vL, vT2), 'permlane', [vL, vT2], [vL, vT2]),
                     valu('v_add_f32', vL, vL, vT2),
                     valu('v_rcp_f32', vRL, vL, trans=True)]
                for I in G: fill.append((i0 + 1, I, None))
        e = len(ops)
        if s == 3:
            vAOl = [['v%d' % (176 + 2 * tp), 'v%d' % (177 + 2 * tp)] for tp in range(4)]
            for tp in range(4):
                for e2 in range(2):
                    fill.append((e - 24, valu('v_add_u32', vAOl[tp][e2], (slot(nb0 + 4 + tp) - slot(nb0 + 4)) & 0xffffffff, vAO[e2]), None))
        for db in range(2):
            at = e - 8 if db == 0 else e
            for u2 in range(2):
                for i in range(4):
                    r0 = 128 + 16 * db + 8 * u2 + 2 * i
                    fill.append((at, valu('v_mul_f32', 'v%d' % r0, 'v%d' % r0, vRL), None))
                    fill.append((at, valu('v_mul_f32', 'v%d' % (r0 + 1), 'v%d' % (r0 + 1), vRL), None))
                for i in range(4):
                    r0 = 128 + 16 * db + 8 * u2 + 2 * i
                    fill.append((at, valu('v_cvt_pk_bf16_f32', 'v%d' % (160 + 4 * (2 * db + u2) + i), 'v%d' % r0, 'v%d' % (r0 + 1)), None))
        if s < 3:
            for tp in range(4):
                n = nb0 + 4 + tp
                cnt = {0: 0, 1: 0}
                for nb in range(14):
                    off = nb * 64
                    fr, rd = tr_frag(vAO[nb % 2], off, off + 7168)
                    d = R('a', 16 * nb, 16)
                    o = Op(mfma(d, fr, R('v', 160 + 4 * tp, 4), d if (s or tp) else 0), rd)
                    cnt[nb % 2] += 1
                    if cnt[nb % 2] == 7:
                        nxt = n + 1 if tp < 3 else n + 5
                        o.post_reads = [valu('v_add_u32', vAO[nb % 2], (slot(nxt) - slot(n)) & 0xffffffff, vAO[nb % 2])]
                    if nb == 0: o.pre.append((BAR, ('s', n)))
                    ops.append(o)
        else:
            for nb in range(14):
                for tp in range(4):
                    off = nb * 64
                    fr, rd = tr_frag(vAOl[tp][nb % 2], off, off + 7168)
                    d = R('a', 16 * nb, 16)
                    o = Op(mfma(d, fr, R('v', 160 + 4 * tp, 4), d), rd)
                    if nb == 0 and tp == 0: o.pre.append((BAR, ('s', nb0 + 4)))
                    ops.append(o)
                at = len(ops)
                tmp = 192 + 16 * (nb % 2)
                pk = 184 + 0
                pk = 0 + 8 * (nb % 4)
                for i in range(16):
                    fill.append((at, Ins('v_accvgpr_read_b32 v%d, a%d' % (tmp + i, 16 * nb + i), 'valu', ['a%d' % (16 * nb + i)], ['v%d' % (tmp + i)]), None))
                    if i % 2 == 1:
                        fill.append((at, valu('v_cvt_pk_bf16_f32', 'v%d' % (pk + i // 2), 'v%d' % (tmp + i - 1), 'v%d' % (tmp + i)), None))
                    if i % 8 == 7:
                        j2 = i // 8
                        fill.append((at, salu('s_add_u32', sSOFF, sPW, nb * 2048), None))
                        fill.append((at, bstore(R('v', pk + 4 * j2, 4), 4, vST, SRD_P, sSOFF, j2 * 1024, cfg.polP), None))
    fi = [0]
    xlast = [0]
    def emit_fill_item(item):
        at, I, extra = item
        if extra and extra[0] == 'vmwait': E.wait_vm_tag(extra[1])
        P(I)
        if I.kind == 'ds_read': xlast[0] = cur[0]
        if extra and extra[0] == 'ret':
            E.label('L_ret_%d' % extra[1])
    def flush_fill_until(pred_regs):
        last = -1
        for k in range(fi[0], len(fill)):
            if fill[k][0] > cur[0] + 1: break
            if (fill[k][1].wr | fill[k][1].rd) & pred_regs: last = k
        while fi[0] <= last:
            emit_fill_item(fill[fi[0]]); fi[0] += 1
    cur = [-1]
    rdi = [0]
    def issue_reads(upto):
        while rdi[0] <= min(upto, len(ops) - 1):
            o = ops[rdi[0]]
            for kind, tag in o.pre:
                if kind == BAR:
                    E.barrier()
                    stamp(E, '%s%d' % tag)
            for I in o.reads:
                for k in range(fi[0], len(fill)):
                    if fill[k][0] > rdi[0]: continue
                    if fill[k][1].wr & I.rd:
                        raise Exception('read of op %d uses register written by pending filler %d: %s' % (rdi[0], k, fill[k][1].text))
                P(I)
            for I in getattr(o, 'post_reads', []): P(I)
            rdi[0] += 1
    issue_reads(-1)
    budget = cfg.budget
    for i, o in enumerate(ops):
        cur[0] = i - 1
        if i == 0:
            issue_reads(LA - 1)
            while fi[0] < len(fill) and fill[fi[0]][0] < 0:
                emit_fill_item(fill[fi[0]]); fi[0] += 1
        flush_fill_until(o.m.rd | o.m.wr)
        P(o.m)
        cur[0] = i
        t_start = E.t
        issue_reads(i + LA)
        while fi[0] < len(fill) and fill[fi[0]][0] <= i:
            used = E.t - t_start
            I = fill[fi[0]][1]
            c = 2 if I.kind == 'trans' else 1
            if used + c > budget - 1: break
            if E.stall_states(I) > 0 or (E.would_wait(I) and not (fill[fi[0]][2] and fill[fi[0]][2][0] == 'vmwait')): break
            emit_fill_item(fill[fi[0]]); fi[0] += 1
            if I.kind == 'trans': t_start -= 1
    while fi[0] < len(fill):
        emit_fill_item(fill[fi[0]]); fi[0] += 1
    ksch = [int(t) for t in cfg.kq_sched.split(',')]
    assert xlast[0] + LA + 2 <= min(ksch[4:7]) * 8 - LA, ('x region released too late', xlast[0])
    stamp(E, 'mend')
    E.wait(vm=0)
    stamp(E, 'end')
    return dict(vT=vT, vT2=vT2, vM=vM, vNM=vNM, vTHR=vTHR, vL=vL)

def f32bits(x):
    import struct
    return struct.unpack('<I', struct.pack('<f', x))[0]
def fl(x): return '0x%08x' % f32bits(x)

def gen_rare(E, r):
    vT, vT2, vM, vNM, vTHR, vL = r['vT'], r['vT2'], r['vM'], r['vNM'], r['vTHR'], r['vL']
    o = E.rawline
    for n in range(1, 16):
        E.label('L_rare_%d' % n)
        o('s_mov_b32 %s, %d' % (sRET, n))
        if n < 15: o('s_branch L_rare')
    E.label('L_rare')
    o('s_nop 15')
    o('v_mov_b32 %s, %s' % (vT2, vT))
    o('s_nop 1')
    o('v_permlane32_swap_b32 %s, %s' % (vT, vT2))
    o('v_max_f32 %s, %s, %s' % (vT, vT, vT2))
    o('v_max_f32 %s, %s, %s' % (vT, vT, vM))
    o('v_sub_f32 %s, %s, %s' % (vT2, vM, vT))
    o('v_mul_f32 %s, %s, %s' % (vT2, sC, vT2))
    o('v_exp_f32 %s, %s' % (vT2, vT2))
    o('v_mov_b32 %s, %s' % (vM, vT))
    o('v_mul_f32 %s, %s, %s' % (vNM, sC, vM))
    o('v_sub_f32 %s, 0, %s' % (vNM, vNM))
    o('v_add_f32 %s, %s, %s' % (vTHR, fl(T_THR / C_SCALE), vM))
    o('v_mul_f32 %s, %s, %s' % (vL, vL, vT2))
    for rr in range(128):
        o('v_lshlrev_b32 v254, 16, v%d' % rr)
        o('v_and_b32 v255, 0xffff0000, v%d' % rr)
        o('v_mul_f32 v254, v254, %s' % vT2)
        o('v_mul_f32 v255, v255, %s' % vT2)
        o('v_cvt_pk_bf16_f32 v%d, v254, v255' % rr)
    o('s_cmp_eq_u32 %s, 15' % sRET)
    o('s_cbranch_scc0 L_rare_ret')
    for rr in range(128, 160):
        o('v_mul_f32 v%d, v%d, %s' % (rr, rr, vT2))
    E.label('L_rare_ret')
    o('s_nop 7')
    for n in range(1, 15):
        o('s_cmp_eq_u32 %s, %d' % (sRET, n))
        o('s_cbranch_scc1 L_ret_%d' % n)
    o('s_branch L_ret_15')

def stamp_store(E, nst, which):
    o = E.rawline
    o('s_waitcnt lgkmcnt(0)')
    o('s_lshl_b32 s36, s2, 1')
    o('s_add_u32 s36, s36, %d' % which)
    o('s_lshl_b32 s36, s36, 7')
    o('s_add_u32 s36, s36, 0xF000000')
    o('s_add_u32 s86, s86, s36')
    o('s_addc_u32 s87, s87, 0')
    o('s_mov_b64 s[38:39], exec')
    o('s_mov_b64 exec, 1')
    o('v_mov_b32 v1, 0')
    for i in range(nst):
        o('v_mov_b32 v2, s%d' % (STAMPS[i]))
        o('v_mov_b32 v3, s%d' % (STAMPS[i] + 1))
        o('global_store_dwordx2 v1, v[2:3], s[86:87] offset:%d' % (8 * i))
        o('s_nop 1')
    o('s_mov_b64 exec, s[38:39]')

def gen_k1():
    name = 'attn_kernel'
    out = [kernel_begin(name)]
    E = Emitter()
    if cfg.stamps:
        for i in range(16):
            E.rawline('s_mov_b64 s[%d:%d], 0' % (STAMPS[i], STAMPS[i] + 1))
    common_prologue(E)
    E.rawline('s_cmp_eq_u32 s3, 3')
    E.rawline('s_cbranch_scc1 L_loader')
    import copy
    Ec = E
    r = gen_consumer(Ec)
    if cfg.stamps:
        Ec.rawline('s_cmp_eq_u32 s3, 0')
        Ec.rawline('s_cbranch_scc0 L_end')
        stamp_store(Ec, 16, 0)
    Ec.rawline('s_endpgm')
    print('consumer: states', Ec.t, 'nops', Ec.nnop, 'waits', Ec.nwait, file=sys.stderr)
    El = Emitter()
    El.label('L_loader')
    gen_loader(El)
    if cfg.stamps: stamp_store(El, 16, 1)
    El.label('L_end')
    El.rawline('s_endpgm')
    Er = Emitter()
    gen_rare(Er, r)
    out.append(Ec.text()); out.append(El.text()); out.append(Er.text())
    return ''.join(out), name

def gen_k2():
    name = 'reduce_kernel'
    E = Emitter()
    o = E.rawline
    o('s_cmp_ge_u32 s2, 336')
    o('s_cbranch_scc1 L2_end')
    o('s_load_dwordx2 s[4:5], s[0:1], 80')
    o('s_load_dwordx2 s[6:7], s[0:1], 96')
    o('v_lshrrev_b32 v1, 6, v0')
    o('v_and_b32 v0, 63, v0')
    o('v_readfirstlane_b32 s3, v1')
    o('s_lshl_b32 s8, s2, 2')
    o('s_nop 1')
    o('s_add_u32 s8, s8, s3')
    o('s_mul_hi_u32 s9, s8, 0x24924925')
    o('s_mul_i32 s10, s9, 7')
    o('s_sub_u32 s10, s8, s10')
    o('s_mul_hi_u32 s11, s9, 0x15555556')
    o('s_mul_i32 s12, s11, 12')
    o('s_sub_u32 s12, s9, s12')
    o('v_and_b32 v2, 7, v0')
    o('v_lshrrev_b32 v3, 3, v0')
    o('s_lshl_b32 s13, s12, 3')
    o('v_add_u32 v2, s13, v2')
    o('s_lshl_b32 s13, s10, 3')
    o('v_add_u32 v3, s13, v3')
    o('v_lshrrev_b32 v4, 5, v2')
    o('v_mul_u32_u24 v4, 28672, v4')
    o('v_lshrrev_b32 v5, 1, v3')
    o('v_lshl_add_u32 v4, v5, 10, v4')
    o('v_and_b32 v5, 1, v3')
    o('v_lshlrev_b32 v5, 5, v5')
    o('v_and_b32 v6, 31, v2')
    o('v_add_u32 v5, v5, v6')
    o('v_lshl_add_u32 v4, v5, 4, v4')
    o('s_and_b32 s13, s11, 7')
    o('s_mul_i32 s13, s13, 96')
    o('v_add_u32 v5, s13, v2')
    o('v_mul_u32_u24 v5, 1792, v5')
    o('s_lshr_b32 s13, s11, 3')
    o('s_mul_i32 s13, s13, 896')
    o('v_lshl_add_u32 v5, v3, 4, v5')
    o('v_add_u32 v5, s13, v5')
    o('s_waitcnt lgkmcnt(0)')
    o('s_mul_i32 s13, s11, %d' % (16 * 86016))
    o('s_add_u32 s16, s6, s13')
    o('s_addc_u32 s17, s7, 0')
    o('s_and_b32 s17, s17, 0xffff')
    o('s_mov_b32 s18, %d' % (16 * 86016))
    o('s_mov_b32 s19, 0x20000')
    o('s_mov_b32 s20, s4')
    o('s_and_b32 s21, s5, 0xffff')
    o('s_mov_b32 s22, 1376256')
    o('s_mov_b32 s23, 0x20000')
    for h in range(16):
        o('s_mov_b32 s24, %d' % (h * 86016))
        o('buffer_load_dwordx4 v[%d:%d], v4, s[16:19], s24 offen%s' % (16 + 4 * h, 19 + 4 * h, cfg.k2pol))
    for h in range(16):
        o('s_waitcnt vmcnt(%d)' % (15 - h))
        for r in range(4):
            src = 16 + 4 * h + r
            if h == 0:
                o('v_lshlrev_b32 v%d, 16, v%d' % (8 + 2 * r, src))
                o('v_and_b32 v%d, 0xffff0000, v%d' % (9 + 2 * r, src))
            else:
                o('v_lshlrev_b32 v6, 16, v%d' % src)
                o('v_and_b32 v7, 0xffff0000, v%d' % src)
                o('v_add_f32 v%d, v%d, v6' % (8 + 2 * r, 8 + 2 * r))
                o('v_add_f32 v%d, v%d, v7' % (9 + 2 * r, 9 + 2 * r))
    for r in range(4):
        o('v_cvt_pk_bf16_f32 v%d, v%d, v%d' % (16 + r, 8 + 2 * r, 9 + 2 * r))
    o('buffer_store_dwordx4 v[16:19], v5, s[20:23], 0 offen')
    E.label('L2_end')
    o('s_endpgm')
    return kernel_begin(name) + E.text(), name

def main(fn):
    k1, n1 = gen_k1()
    k2, n2 = gen_k2()
    s = header([(n1, (256, 1, 1), (256, 1, 1), 163840), (n2, (336, 1, 1), (256, 1, 1), 0)])
    s += k1 + k2
    s += kernel_desc(n1, 512, 102, 256)
    s += kernel_desc(n2, 80, 32, 80)
    open(fn, 'w').write(s)

if __name__ == '__main__':
    ap = argparse.ArgumentParser()
    ap.add_argument('-o', default='k.s')
    ap.add_argument('--stamps', action='store_true')
    ap.add_argument('--set', action='append', default=[])
    a = ap.parse_args()
    cfg.stamps = a.stamps
    for kv in a.set:
        k, v = kv.split('=', 1)
        old = getattr(cfg, k)
        setattr(cfg, k, (v == '1') if isinstance(old, bool) else (int(v) if isinstance(old, int) else (' ' + v.replace('+', ' ') if v else '')))
    main(a.o)
```

```python
import subprocess, re, sys
from asmlib import *
extra = ' '.join(sys.argv[1:])
subprocess.check_call('python3 gen.py -o cal_base.s --stamps %s --set stamp_list=start,q0,s0,s16,s40,x5,x6,x7,x8,x9,x10,x11,x12,x13,mend,end' % extra, shell=True)
base = open('cal_base.s').read()
k2mod = base.replace("""L2_end:
  s_endpgm""", """  s_cmp_eq_u32 s2, 0
  s_cbranch_scc0 L2_end
  s_waitcnt vmcnt(0)
  s_memrealtime s[26:27]
  s_waitcnt lgkmcnt(0)
  v_mov_b32 v1, 0xF100000
  v_mov_b32 v2, s26
  v_mov_b32 v3, s27
  global_store_dwordx2 v1, v[2:3], s[6:7]
L2_end:
  s_endpgm""")
def spin(mult, ia, ib, k2end=False):
    offb = 0xF100000 if k2end else 0xF000000 + 8*ib
    return kernel_begin('spin_kernel') + '''
  s_cmp_ge_u32 s2, 1
  s_cbranch_scc1 L3_end
  s_load_dwordx2 s[6:7], s[0:1], 96
  s_waitcnt lgkmcnt(0)
  v_mov_b32 v1, %d
  v_mov_b32 v4, %d
  global_load_dword v2, v1, s[6:7] sc1
  global_load_dword v3, v4, s[6:7] sc1
  s_waitcnt vmcnt(0)
  v_sub_u32 v2, v3, v2
  s_nop 1
  v_readfirstlane_b32 s8, v2
  s_nop 3
  s_min_u32 s8, s8, 20000
  s_mul_i32 s8, s8, %d
  s_memrealtime s[10:11]
  s_waitcnt lgkmcnt(0)
L3_loop:
  s_memrealtime s[12:13]
  s_waitcnt lgkmcnt(0)
  s_sub_u32 s14, s12, s10
  s_cmp_lt_u32 s14, s8
  s_cbranch_scc1 L3_loop
L3_end:
  s_endpgm
''' % (0xF000000 + 8*ia, offb, mult) + kernel_desc('spin_kernel', 64, 32, 64)
def mk(fn, mult, ia, ib, k2end=False):
    lines = k2mod.split('\n')
    lines.insert(2, '; @launch kernel=spin_kernel grid=(1,1,1) block=(64,1,1) lds=0')
    open(fn, 'w').write('\n'.join(lines) + spin(mult, ia, ib, k2end))
mk('cal_0.s', 0, 0, 15)
mk('cal_k1.s', 4, 0, 15)
mk('cal_all.s', 4, 0, 15, True)
mk('cal_q0.s', 10, 0, 1)
mk('cal_s0.s', 4, 0, 2)
mk('cal_s16.s', 4, 0, 3)
```
